```python
import torch

def _softmax(x, axis=-1):
    return torch.softmax(x, dim=axis)

def _gelu(x):
    return torch.nn.functional.gelu(x, approximate='tanh')

def _silu(x):
    return torch.nn.functional.silu(x)

def _sigmoid(x):
    return torch.sigmoid(x)

def _layernorm(x, axis=-1, eps=1e-05):
    m = x.mean(dim=axis, keepdim=True)
    v = x.var(dim=axis, keepdim=True, unbiased=False)
    return (x - m) / torch.sqrt(v + eps)

def _scatter_add(tgt, idx, src, axis=0):
    return tgt.clone().index_add_(axis, idx, src)

def _segment_sum(src, seg, n):
    out = torch.zeros((n,) + src.shape[1:], dtype=src.dtype)
    return out.index_add_(0, seg, src)

def _pad(x, pw):
    flat = tuple((v for pair in reversed(pw) for v in pair))
    return torch.nn.functional.pad(x, flat)
kernel_name = 'standalone__window_attn_twins__vision'

def setup_inputs():

    _w = lambda a: (lambda t: t.to(torch.bfloat16) if t.is_floating_point() else t)(torch.as_tensor(a))
    H = W = 224 // 7 * 7
    C = 96
    return {'x': _w((lambda *s: torch.randn(*s, dtype=torch.bfloat16) * 0.8)(1, H, W, C)), 'wq': _w((lambda *s: torch.randn(*s, dtype=torch.bfloat16) * 0.8)(C, C)), 'wkv': _w((lambda *s: torch.randn(*s, dtype=torch.bfloat16) * 0.8)(C, 2 * C)), 'wo': _w((lambda *s: torch.randn(*s, dtype=torch.bfloat16) * 0.05)(C, C))}

def reference(x, wq, wkv, wo):
    B, H, W, C = x.shape
    win = 7
    nh, nw = (H // win, W // win)
    xs = x.reshape(B, nh, win, nw, win, C).mean(axis=(2, 4)).reshape(B, nh * nw, C)
    q = x.reshape(B, H * W, C) @ wq
    kv = xs @ wkv
    k, v = (kv[..., :C].clone(), kv[..., C:].clone())
    scale = C ** (-0.5)
    p = _softmax(torch.einsum('bqc,bkc->bqk', q, k) * scale, axis=-1)
    o = torch.einsum('bqk,bkc->bqc', p, v) @ wo
    return o.reshape(B, H, W, C)
```

```python
import sys, math, struct

NAME = 'standalone__window_attn_twins__vision'
XBYTES = 9633792
STAGE = 49152
TILE = 12288
WSBYTES = 8 * STAGE

def f32bits(x): return struct.unpack('<I', struct.pack('<f', x))[0]

class Asm:
    def __init__(self): self.l = []
    def __call__(self, s):
        for x in s.strip('\n').split('\n'): self.l.append('    ' + x.strip())
    def label(self, s): self.l.append(s + ':')
    def raw(self, s): self.l.append(s)
    def text(self): return '\n'.join(self.l) + '\n'

def vr(b, n=4): return f'v[{b}:{b+n-1}]'
def ar(b, n=4): return f'a[{b}:{b+n-1}]'
def mfma(d, a, b, c): return f'v_mfma_f32_16x16x32_bf16 {d}, {a}, {b}, {c}'

def srd(A, d, lo, nbytes):
    A(f's_mov_b32 s{d}, s{lo}\ns_and_b32 s{d+1}, s{lo+1}, 0xffff\ns_mov_b32 s{d+2}, {nbytes}\ns_mov_b32 s{d+3}, 0x20000')

def gen_prep():
    A = Asm()
    XL, WKV, WO, XS = 0, 43008, 79872, 98304
    A('s_cmp_ge_u32 s2, 256\ns_cbranch_scc1 Lp_end')
    A('s_load_dwordx4 s[4:7], s[0:1], 0\ns_load_dwordx4 s[8:11], s[0:1], 16\ns_load_dwordx2 s[12:13], s[0:1], 48')
    A('v_lshrrev_b32 v1, 6, v0\nv_and_b32 v2, 63, v0')
    A('v_readfirstlane_b32 s24, v1')
    A('v_lshlrev_b32 v3, 4, v2')
    A('v_and_b32 v4, 15, v2\nv_lshrrev_b32 v5, 4, v2')
    A('s_lshr_b32 s25, s2, 3\ns_and_b32 s26, s2, 7\ns_mul_i32 s27, s25, 301056\ns_mul_i32 s28, s26, 5376\ns_add_u32 s27, s27, s28')
    A('s_mul_i32 s28, s24, 43008\ns_add_u32 s27, s27, s28')
    A('s_mul_i32 s29, s24, 6144')
    A('s_waitcnt lgkmcnt(0)')
    srd(A, 32, 4, XBYTES); srd(A, 36, 6, 18432); srd(A, 40, 8, 36864); srd(A, 44, 10, 18432); srd(A, 48, 12, WSBYTES)
    def xrow():
        A('s_mov_b32 m0, s29\ns_add_u32 s30, s27, 4096')
        for k in range(4): A(f'buffer_load_dwordx4 v3, s[32:35], s27 offen offset:{1024*k} lds')
        A('s_add_u32 m0, s29, 4096\ns_nop 0')
        for k in range(2): A(f'buffer_load_dwordx4 v3, s[32:35], s30 offen offset:{1024*k} lds')
    xrow()
    A('s_cmp_eq_u32 s24, 3\ns_cbranch_scc1 Lp_w3')
    A(f's_add_u32 s27, s27, {4*43008}\ns_add_u32 s29, s29, {4*6144}')
    xrow()
    A(f's_mul_i32 s27, s24, 12288\ns_add_u32 s29, s27, {WKV}')
    for grp in range(3):
        A('s_mov_b32 m0, s29\ns_nop 0')
        for k in range(4): A(f'buffer_load_dwordx4 v3, s[40:43], s27 offen offset:{1024*k} lds')
        if grp < 2: A('s_add_u32 s27, s27, 4096\ns_add_u32 s29, s29, 4096')
    A('s_branch Lp_loaded')
    A.label('Lp_w3')
    for grp in range(5):
        A(f's_mov_b32 m0, {WO + 4096*grp}\ns_mov_b32 s27, {4096*grp}')
        for k in range(4 if grp < 4 else 2): A(f'buffer_load_dwordx4 v3, s[44:47], s27 offen offset:{1024*k} lds')
    A.label('Lp_loaded')
    A('v_lshrrev_b32 v6, 2, v4\nv_and_b32 v7, 3, v4\nv_lshl_add_u32 v8, v6, 3, v7')
    A('v_mul_u32_u24 v9, 192, v8\nv_lshl_add_u32 v9, v5, 4, v9')
    WQ = 28
    A('s_cmp_ge_u32 s24, 2\ns_cbranch_scc1 Lp_nowq')
    A('s_cmp_eq_u32 s24, 0')
    for e in range(3):
        o0 = (32*(e >> 1) + 4*(e & 1)) * 192; tt = 3 + e; o1 = (32*(tt >> 1) + 4*(tt & 1)) * 192
        A(f's_cselect_b32 s{52+e}, {o0}, {o1}') if max(o0, o1) <= 64 else A(f's_mov_b32 s{52+e}, {o1}\ns_cselect_b32 s{52+e}, {o0}, s{52+e}')
    for e in range(3):
        for s in range(3):
            A(f'buffer_load_dwordx4 {vr(WQ + 12*e + 4*s)}, v9, s[36:39], s{52+e} offen offset:{64*s}')
    A.label('Lp_nowq')
    A('v_mul_u32_u24 v10, 7, v4\nv_lshlrev_b32 v11, 3, v5\nv_sub_u32 v10, v11, v10')
    A('v_cmp_gt_u32 vcc, 4, v4\nv_mov_b32 v11, 0x3f80\nv_mov_b32 v12, 0x3f800000\nv_mov_b32 v13, 100')
    A('v_cndmask_b32 v10, v13, v10, vcc')
    SEL = 16
    for j in range(8):
        A(f'v_add_u32 v13, {j}, v10\nv_cmp_gt_u32 vcc, 7, v13\ns_nop 1')
        if j % 2 == 0: A(f'v_cndmask_b32 v{SEL + j//2}, 0, v11, vcc')
        else: A(f'v_cndmask_b32 v14, 0, v12, vcc\nv_or_b32 v{SEL + j//2}, v{SEL + j//2}, v14')
    A('v_lshl_add_u32 v10, v5, 3, v6\nv_lshlrev_b32 v11, 4, v7')
    A('v_mul_u32_u24 v20, 192, v10\nv_add_u32 v20, v20, v11')
    A('v_mul_u32_u24 v21, 384, v10\nv_add_u32 v21, v21, v11')
    A('s_lshl_b32 s27, s24, 6\nv_add_u32 v22, s27, v20')
    A(f's_lshr_b32 s27, s24, 1\ns_mul_i32 s27, s27, 192\ns_add_u32 s27, s27, {WKV}\nv_add_u32 v21, s27, v21')
    A('s_and_b32 s27, s26, 3\ns_lshr_b32 s28, s26, 2\ns_mul_i32 s29, s25, 12288')
    A('s_mul_i32 s30, s28, 3072\ns_add_u32 s30, s30, s29\ns_lshl_b32 s31, s27, 6\ns_add_u32 s30, s30, s31')
    A('v_lshlrev_b32 v23, 8, v5\nv_lshl_add_u32 v23, v4, 4, v23\nv_add_u32 v23, s30, v23')
    A('v_cmp_gt_u32 vcc, 4, v4\nv_mov_b32 v13, 0x80000000\ns_nop 1\nv_cndmask_b32 v23, v13, v23, vcc')
    A('s_lshl_b32 s30, s27, 8\ns_add_u32 s30, s30, s29\ns_lshl_b32 s31, s28, 3\ns_add_u32 s30, s30, s31\ns_add_u32 s30, s30, 6144')
    A('v_lshlrev_b32 v24, 4, v4\nv_add_u32 v24, s30, v24')
    A('v_cmp_gt_u32 vcc, 16, v2\ns_nop 1\nv_cndmask_b32 v24, v13, v24, vcc')
    A('v_mov_b32 v25, 0\nv_mov_b32 v26, 0')
    A('s_waitcnt vmcnt(0)\ns_barrier')
    XF = 64
    A('s_cmp_eq_u32 s24, 3\ns_cbranch_scc1 Lp_nosum')
    for r in range(7):
        for h in range(2):
            b = XF + 4*(2*r + h)
            A(f'ds_read_b64_tr_b16 {vr(b,2)}, v22 offset:{r*6144 + 8*h}')
            A(f'ds_read_b64_tr_b16 {vr(b+2,2)}, v22 offset:{r*6144 + 8*h + 768}')
    D0 = 120
    for r in range(7):
        A(f's_waitcnt lgkmcnt({min(15, 4*(6-r))})')
        for h in range(2):
            A(mfma(vr(D0 + 4*h), vr(XF + 4*(2*r+h)), vr(SEL), '0' if r == 0 else vr(D0 + 4*h)))
    A(f's_mov_b32 s27, {f32bits(1.0/49.0)}\ns_nop 7')
    for i in range(8): A(f'v_mul_f32 v{D0+i}, s27, v{D0+i}')
    for i in range(4): A(f'v_cvt_pk_bf16_f32 v{D0+i}, v{D0+2*i}, v{D0+2*i+1}')
    A(f's_lshl_b32 s27, s24, 10\ns_add_u32 s27, s27, {XS}\nv_add_u32 v13, s27, v3')
    A(f'ds_write_b128 v13, {vr(D0)}')
    A.label('Lp_nosum')
    WF = 128
    for tt in range(6):
        u, h = tt >> 1, tt & 1
        for s in range(3):
            b = WF + 12*tt + 4*s
            off = 32*s*384 + (32*u + 4*h)*2
            A(f'ds_read_b64_tr_b16 {vr(b,2)}, v21 offset:{off}')
            A(f'ds_read_b64_tr_b16 {vr(b+2,2)}, v21 offset:{off + 4*384}')
    A('s_cmp_lt_u32 s24, 2\ns_cbranch_scc1 Lp_nowo')
    A('s_cmp_eq_u32 s24, 2')
    for e in range(3):
        o0 = (32*(e >> 1) + 4*(e & 1)) * 2 + WO; tt = 3 + e; o1 = (32*(tt >> 1) + 4*(tt & 1)) * 2 + WO
        A(f's_mov_b32 s{52+e}, {o1}\ns_cselect_b32 s{52+e}, {o0}, s{52+e}')
    for e in range(3):
        A(f'v_add_u32 v13, s{52+e}, v20')
        for s in range(3):
            b = WQ + 12*e + 4*s
            A(f'ds_read_b64_tr_b16 {vr(b,2)}, v13 offset:{32*s*192}')
            A(f'ds_read_b64_tr_b16 {vr(b+2,2)}, v13 offset:{32*s*192 + 768}')
    A.label('Lp_nowo')
    A('s_waitcnt lgkmcnt(0)\ns_barrier')
    XSF = 200
    for s in range(3): A(f'ds_read_b128 {vr(XSF + 4*s)}, v3 offset:{XS + 1024*s - 65536}') if False else None
    A(f'v_add_u32 v13, {XS}, v3')
    for s in range(3): A(f'ds_read_b128 {vr(XSF + 4*s)}, v13 offset:{1024*s}')
    KV = 64
    for s in range(3):
        A(f's_waitcnt lgkmcnt({2-s})')
        for tt in range(6):
            A(mfma(vr(KV + 4*tt), vr(WF + 12*tt + 4*s), vr(XSF + 4*s), '0' if s == 0 else vr(KV + 4*tt)))
    KB = 88
    A('s_nop 3')
    for tt in range(6):
        A(f'v_cvt_pk_bf16_f32 v{KB + 2*tt}, v{KV + 4*tt}, v{KV + 4*tt + 1}')
        A(f'v_cvt_pk_bf16_f32 v{KB + 2*tt + 1}, v{KV + 4*tt + 2}, v{KV + 4*tt + 3}')
    R = 100
    A('s_cmp_ge_u32 s24, 2\ns_cbranch_scc1 Lp_vpath')
    for s in range(3):
        for e in range(3):
            A(mfma(vr(R + 4*e), vr(WQ + 12*e + 4*s), vr(KB + 4*s), '0' if s == 0 else vr(R + 4*e)))
    c = math.log2(math.e) / math.sqrt(96.0)
    A(f's_mov_b32 s27, {f32bits(c)}')
    A('s_cmp_eq_u32 s24, 0')
    for e in range(3):
        tt = 3 + e
        o0 = (e >> 1)*1024 + 8*(e & 1); o1 = (tt >> 1)*1024 + 8*(tt & 1)
        A(f's_mov_b32 s{52+e}, {o1}\ns_cselect_b32 s{52+e}, {o0}, s{52+e}')
    A('s_nop 1')
    for e in range(3):
        for i in range(4): A(f'v_mul_f32 v{R+4*e+i}, s27, v{R+4*e+i}')
        A(f'v_cvt_pk_bf16_f32 v{R+4*e}, v{R+4*e}, v{R+4*e+1}\nv_cvt_pk_bf16_f32 v{R+4*e+1}, v{R+4*e+2}, v{R+4*e+3}')
        A(f'buffer_store_dwordx2 {vr(R+4*e,2)}, v23, s[48:51], s{52+e} offen')
    A('s_endpgm')
    A.label('Lp_vpath')
    for s in range(3):
        for e in range(3):
            A(mfma(vr(R + 4*e), vr(KB + 4*s), vr(WQ + 12*e + 4*s), '0' if s == 0 else vr(R + 4*e)))
    A('s_sub_u32 s27, s24, 2\ns_mul_i32 s27, s27, 3072\ns_nop 7')
    for e in range(3):
        A(f'v_cvt_pk_bf16_f32 v{R+4*e}, v{R+4*e}, v{R+4*e+1}\nv_cvt_pk_bf16_f32 v{R+4*e+1}, v{R+4*e+2}, v{R+4*e+3}')
        A(f'buffer_store_dwordx2 {vr(R+4*e,2)}, v24, s[48:51], s27 offen offset:{1024*e}')
    A.label('Lp_end')
    A('s_endpgm')
    return A.text(), 212, 101376

V_LANE16 = 1
V_A = 2
V_ROT = 6
V_D = 10
V_Q = 13
V_T = 14
V_TMP = 15
V_S = 16
V_P = 40
V_M = 52
V_O = 68
V_X = 180
A_Q = 0
A_K = 48
A_V = 96
A_ONE = 192
NV = 208

def gen_attn(stamp=False):
    A = Asm()
    items = [(i, t) for i in range(4) for t in range(3)] + [(3, 3)]
    sbuf = lambda n: 2 if n % 13 == 12 else (n % 13) % 2
    def qk(n):
        i, t = items[n % 13]; S = V_S + 8*sbuf(n)
        return [mfma(vr(S + 4*a), ar(A_K + 24*(i % 2) + 4*(3*a + s)), ar(A_Q + 12*t + 4*s), vr(V_M + 4*t) if s == 0 else vr(S + 4*a))
                for a in range(2) for s in range(3)]
    def pv(n):
        i, t = items[n % 13]; P = V_P + 4*sbuf(n); O = V_O + 28*t
        return [mfma(vr(O + 4*c), ar(A_V + 24*i + 4*c), vr(P), vr(O + 4*c)) for c in range(6)] + [mfma(vr(O + 24), ar(A_ONE), vr(P), vr(O + 24))]
    def rdK(i, f): return f'ds_read_b128 {ar(A_K + 24*(i % 2) + 4*f)}, v{V_A + i} offset:{1024*f}'
    def rdV(i, f): return f'ds_read_b128 {ar(A_V + 24*i + 4*f)}, v{V_A + i} offset:{6144 + 1024*f}'

    A('s_cmp_ge_u32 s2, 256\ns_cbranch_scc1 La_end')
    A('s_load_dwordx2 s[4:5], s[0:1], 0\ns_load_dwordx2 s[6:7], s[0:1], 32\ns_load_dwordx2 s[8:9], s[0:1], 48')
    if stamp: A('s_memtime s[60:61]')
    A('v_lshrrev_b32 v15, 6, v0\nv_and_b32 v16, 63, v0')
    A('v_readfirstlane_b32 s24, v15')
    A(f'v_lshlrev_b32 v{V_LANE16}, 4, v16')
    A('v_and_b32 v17, 15, v16\nv_lshrrev_b32 v18, 4, v16')
    A('s_mul_i32 s25, s24, 12288')
    for k in range(3): A(f's_add_u32 s26, s25, {4096*k}\nv_add_u32 v{V_D+k}, s26, v{V_LANE16}')
    A('s_mul_i32 s26, s2, 196\ns_mul_i32 s27, s24, 48\ns_add_u32 s27, s27, s26\ns_mul_i32 s27, s27, 192')
    A('v_mul_u32_u24 v19, 192, v17\nv_lshl_add_u32 v19, v18, 4, v19')
    A(f'v_add_u32 v{V_Q}, s27, v19')
    A(f's_add_u32 s26, s26, 192\ns_mul_i32 s26, s26, 192\nv_add_u32 v{V_T}, s26, v19')
    A(f'v_cmp_gt_u32 vcc, 4, v17\nv_mov_b32 v20, 0x80000000\ns_mov_b32 s28, 6144\ns_mov_b32 s44, 0')
    A(f'v_cndmask_b32 v{V_T}, v20, v{V_T}, vcc')
    A('s_waitcnt lgkmcnt(0)')
    srd(A, 12, 4, XBYTES); srd(A, 16, 6, XBYTES); srd(A, 20, 8, WSBYTES)
    for t in range(3):
        for s in range(3):
            so, im = ('0', 3072*t + 64*s) if t < 2 else ('s28', 64*s)
            A(f'buffer_load_dwordx4 {ar(A_Q + 12*t + 4*s)}, v{V_Q}, s[12:15], {so} offen offset:{im}')
    for s in range(3):
        A(f'buffer_load_dwordx4 {ar(A_Q + 36 + 4*s)}, v{V_T}, s[12:15], 0 offen offset:{64*s}')
    def dma_group(k, soff):
        return [f'buffer_load_dwordx4 v{V_D+k}, s[20:23], {soff} offen offset:{1024*j} lds' for j in range(4)]
    A.label('La_restart')
    for st in range(2):
        A(f's_mov_b32 s30, {st*STAGE}')
        for k in range(3):
            A(f's_add_u32 m0, s25, {st*STAGE + 4096*k}\ns_nop 0')
            for x in dma_group(k, 's30'): A(x)
    for i in range(4):
        A(f's_add_u32 s26, s24, {i+1}\ns_and_b32 s26, s26, 3\ns_mul_i32 s26, s26, {TILE}\nv_add_u32 v{V_ROT+i}, s26, v{V_LANE16}')
    for i in range(4): A(f'v_mov_b32 v{V_A+i}, v{V_ROT+i}')
    A(f'v_and_b32 v15, 3, v0\nv_cmp_eq_u32 vcc, 0, v15\nv_mov_b32 v16, 0x3f803f80\ns_nop 0\nv_cndmask_b32 v15, 0, v16, vcc')
    for j in range(4): A(f'v_accvgpr_write_b32 a{A_ONE+j}, v15')
    for r in range(V_O, V_O + 112): A(f'v_mov_b32 v{r}, 0')
    for r in range(V_P + 8, V_P + 12): A(f'v_mov_b32 v{r}, 0')
    for r in range(A_V + 72, A_V + 96): A(f'v_accvgpr_write_b32 a{r}, 0')
    A(f's_mov_b32 s31, {STAGE}\ns_mov_b32 s32, {2*STAGE}\ns_mov_b32 s30, {2*STAGE}\ns_mov_b32 s33, 7')
    A('s_waitcnt vmcnt(12)\ns_barrier')
    if stamp: A('s_memtime s[62:63]')
    for f in range(6): A(rdK(0, f))
    A('s_cmp_lg_u32 s44, 0\ns_cbranch_scc1 La_have_m')
    for f in range(3): A(f'ds_read_b128 {ar(A_K + 24 + 4*f)}, v{V_LANE16} offset:{1024*f}')
    A('s_waitcnt lgkmcnt(3)')
    for s in range(3):
        for t in range(3):
            A(mfma(vr(V_M + 4*t), ar(A_K + 4*s), ar(A_Q + 12*t + 4*s), '0' if s == 0 else vr(V_M + 4*t)))
    A('s_waitcnt lgkmcnt(0)')
    for s in range(3):
        A(mfma(vr(V_M + 12), ar(A_K + 24 + 4*s), ar(A_Q + 36 + 4*s), '0' if s == 0 else vr(V_M + 12)))
    for f in range(6): A(rdV(0, f))
    A('s_nop 1')
    for t in range(4):
        m = V_M + 4*t
        A(f'v_max3_f32 v{m}, v{m}, v{m+1}, v{m+2}\nv_max_f32 v{m}, v{m}, v{m+3}')
    def xlane_negate():
        for swap in ('v_permlane32_swap_b32', 'v_permlane16_swap_b32'):
            for t in range(4): A(f'v_mov_b32 v{V_M+4*t+1}, v{V_M+4*t}')
            for t in range(4): A(f'{swap} v{V_M+4*t}, v{V_M+4*t+1}')
            for t in range(4): A(f'v_max_f32 v{V_M+4*t}, v{V_M+4*t}, v{V_M+4*t+1}')
        for t in range(4):
            A(f'v_sub_f32 v{V_M+4*t}, 0, v{V_M+4*t}')
        for t in range(4):
            for j in range(1, 4): A(f'v_mov_b32 v{V_M+4*t+j}, v{V_M+4*t}')
    xlane_negate()
    A('s_branch La_m_done')
    A.label('La_have_m')
    for f in range(6): A(rdV(0, f))
    A('s_waitcnt lgkmcnt(6)')
    A.label('La_m_done')
    for f in range(6): A(rdK(1, f))
    for x in qk(0): A(x)
    A(f'v_add_u32 v{V_A+0}, s31, v{V_ROT+0}')
    A('s_nop 3')
    if stamp: A('s_memtime s[64:65]')

    pos = {}
    def place(lst, start):
        sl, k = start
        for x in lst:
            pos[(sl % 13, k)] = x
            k += 1
            if k == 4: k = 0; sl += 1
    for i in (1, 2, 3):
        place([rdV(i, f) for f in range(6)] + [rdK((i + 1) % 4, f) for f in range(6)], (3*i - 3, 2))
    place([rdV(0, f) for f in range(6)], (9, 2))
    place([rdK(1, f) for f in range(6)], (11, 1))
    valu_extra = {(11, 0): f'v_add_u32 v{V_A+1}, s31, v{V_ROT+1}', (12, 3): f'v_add_u32 v{V_A+2}, s31, v{V_ROT+2}',
                  (0, 0): f'v_add_u32 v{V_A+3}, s34, v{V_ROT+3}', (0, 1): None}
    shadow = {}
    spare = {}
    for i in range(4): spare[3*i] = ['s_waitcnt lgkmcnt(2)']
    spare[7] = ['s_waitcnt vmcnt(0)', 's_barrier']
    shadow[(8, 0)] = 's_cmp_ge_u32 s33, 2'
    shadow[(8, 1)] = 's_cselect_b32 s35, s32, 0x30000'
    shadow[(8, 3)] = 's_add_u32 s35, s35, s25'
    for k, sl in enumerate((8, 10, 11)):
        shadow[(sl, 9)] = f's_add_u32 m0, s35, {4096*k}' if k else 's_mov_b32 m0, s35'
        spare[sl] = dma_group(k, 's30')
    shadow[(12, 0)] = f's_add_u32 s30, s30, {STAGE}'
    shadow[(12, 1)] = 's_mov_b32 s34, s31'
    shadow[(12, 3)] = f's_add_u32 s36, s32, {STAGE}'
    shadow[(12, 4)] = f's_cmp_eq_u32 s36, {3*STAGE}'
    shadow[(12, 6)] = 's_cselect_b32 s36, 0, s36'
    spare[12] = [f'v_add_u32 v{V_A+0}, s32, v{V_ROT+0}', 's_mov_b32 s31, s32', 's_mov_b32 s32, s36']
    A('s_mov_b32 s34, 0')
    A.raw('.p2align 6')
    A.label('La_loop')
    for n in range(13):
        mf = qk(n + 1) + pv(n - 1)
        S = V_S + 8*sbuf(n); P = V_P + 4*sbuf(n)
        for gp in range(13):
            A(mf[gp])
            if (n, gp) in shadow: A(shadow[(n, gp)])
            if gp == 12:
                for x in spare.get(n, []): A(x)
            elif gp % 3 == 2:
                k = gp // 3
                if (n, k) in pos: A(pos[(n, k)])
                A(f'v_cvt_pk_bf16_f32 v{P + k}, v{S + 2*k}, v{S + 2*k + 1}')
                if valu_extra.get((n, k)):
                    assert (n, k) not in pos
                    A(valu_extra[(n, k)])
            else:
                e = 2*(gp // 3) + gp % 3
                A(f'v_exp_f32 v{S + e}, v{S + e}')
    A('s_sub_u32 s33, s33, 1\ns_cbranch_scc0 La_loop')
    if stamp: A('s_memtime s[66:67]')
    for x in pv(12): A(x)
    THR = f32bits(2.0 ** 80)
    A(f's_mov_b32 s37, {THR}')
    A(f'v_cmp_ngt_f32 s[38:39], s37, v{V_O + 24}\nv_cmp_ngt_f32 s[40:41], s37, v{V_O + 52}\nv_cmp_ngt_f32 s[42:43], s37, v{V_O + 80}')
    for t in range(3): A(f'v_rcp_f32 v{V_X + t}, v{V_O + 28*t + 24}')
    A('s_or_b64 s[38:39], s[38:39], s[40:41]\ns_or_b64 s[38:39], s[38:39], s[42:43]')
    A('s_cselect_b32 s37, 1, 0')
    A(f's_mul_i32 s26, s24, 7168\nv_add_u32 v{V_TMP}, s26, v{V_LANE16}\nv_mov_b32 v{V_X+3}, s37')
    A('s_nop 0')
    A(f'v_mov_b32 v{V_O + 84 + 25}, v{V_X+3}')
    for c in range(7): A(f'ds_write_b128 v{V_TMP}, {vr(V_O + 84 + 4*c)} offset:{1024*c}')
    def norm_store(O, r, voff, t, us):
        for u in us:
            for j in range(8): A(f'v_mul_f32 v{O + 8*u + j}, v{O + 8*u + j}, v{r}')
            for j in range(4): A(f'v_cvt_pk_bf16_f32 v{O + 8*u + j}, v{O + 8*u + 2*j}, v{O + 8*u + 2*j + 1}')
            so, im = ('0', 3072*t + 64*u) if t < 2 else ('s28', 64*u)
            A(f'buffer_store_dwordx4 {vr(O + 8*u)}, v{voff}, s[16:19], {so} offen offset:{im}')
    for t in range(3): norm_store(V_O + 28*t, V_X + t, V_Q, t, range(3))
    A('s_waitcnt lgkmcnt(0)\ns_barrier')
    L = V_S
    for w in range(4): A(f'ds_read_b64 {vr(L + 2*w, 2)}, v{V_LANE16} offset:{w*7168 + 6144}')
    A(f's_lshl_b32 s26, s24, 11\nv_add_u32 v{V_TMP}, s26, v{V_LANE16}')
    TP = V_O
    for w in range(4):
        for h in range(2): A(f'ds_read_b128 {vr(TP + 8*w + 4*h)}, v{V_TMP} offset:{w*7168 + 1024*h}')
    A('s_waitcnt lgkmcnt(8)')
    A(f'v_add_f32 v{L}, v{L}, v{L+2}\nv_add_f32 v{L+4}, v{L+4}, v{L+6}\nv_or_b32 v{L+1}, v{L+1}, v{L+3}\nv_or3_b32 v{L+1}, v{L+1}, v{L+5}, v{L+7}')
    A(f'v_add_f32 v{L}, v{L}, v{L+4}\ns_mov_b32 s37, {THR}')
    A(f'v_cmp_ne_u32 s[38:39], 0, v{L+1}\nv_cmp_ngt_f32 s[40:41], s37, v{L}\nv_rcp_f32 v{V_X}, v{L}')
    A('s_waitcnt lgkmcnt(0)')
    for j in range(8):
        A(f'v_add_f32 v{TP+j}, v{TP+j}, v{TP+8+j}\nv_add_f32 v{TP+16+j}, v{TP+16+j}, v{TP+24+j}')
    for j in range(8): A(f'v_add_f32 v{TP+j}, v{TP+j}, v{TP+16+j}')
    A('s_cmp_eq_u32 s24, 3\ns_cbranch_scc1 La_notstore')
    for j in range(8): A(f'v_mul_f32 v{TP+j}, v{TP+j}, v{V_X}')
    for j in range(4): A(f'v_cvt_pk_bf16_f32 v{TP+j}, v{TP+2*j}, v{TP+2*j+1}')
    A(f's_lshl_b32 s26, s24, 6\nbuffer_store_dwordx4 {vr(TP)}, v{V_T}, s[16:19], s26 offen')
    A.label('La_notstore')
    if stamp:
        A('s_memtime s[68:69]\ns_waitcnt lgkmcnt(0)')
        A('s_lshl_b32 s26, s2, 2\ns_add_u32 s26, s26, s24\ns_lshl_b32 s26, s26, 5\ns_add_u32 s26, s26, 0x100000')
        A('s_add_u32 s8, s8, s26\ns_addc_u32 s9, s9, 0\nv_mov_b32 v16, 0')
        for j in range(5):
            A(f'v_mov_b32 v17, s{60+2*j}\nglobal_store_dword v16, v17, s[8:9] offset:{4*j}')
    A('s_or_b64 s[38:39], s[38:39], s[40:41]\ns_cbranch_scc0 La_end')
    A('s_cmp_lg_u32 s44, 0\ns_cbranch_scc1 La_end')
    A('s_mov_b32 s44, 1\ns_waitcnt vmcnt(0)\ns_barrier')
    for t in range(4): A(f'v_mov_b32 v{V_M+4*t}, 0xff800000')
    A('s_mov_b32 s30, 0')
    A.label('La_maxloop')
    A('s_add_u32 s29, s30, 4096')
    for f in range(6):
        A(f'buffer_load_dwordx4 {ar(A_K + 4*f)}, v{V_LANE16}, s[20:23], {"s30" if f < 4 else "s29"} offen offset:{1024*(f % 4)}')
    A('s_waitcnt vmcnt(0)')
    for t in range(4):
        S = V_S
        for a in range(2):
            for s in range(3):
                A(mfma(vr(S + 4*a), ar(A_K + 4*(3*a + s)), ar(A_Q + 12*t + 4*s), '0' if s == 0 else vr(S + 4*a)))
        A('s_nop 7\ns_nop 1')
        for j in range(4): A(f'v_max3_f32 v{V_M+4*t}, v{V_M+4*t}, v{S+2*j}, v{S+2*j+1}')
    A(f's_add_u32 s30, s30, {TILE}\ns_cmp_lt_u32 s30, {WSBYTES}\ns_cbranch_scc1 La_maxloop')
    xlane_negate()
    A('s_branch La_restart')
    A.label('La_end')
    A('s_endpgm')
    return A.text(), NV + 196, 3*STAGE

def kd(name, nv, accum):
    return f""".amdhsa_kernel {name}
  .amdhsa_next_free_vgpr {nv}
  .amdhsa_next_free_sgpr 96
  .amdhsa_accum_offset {accum}
  .amdhsa_group_segment_fixed_size 0
  .amdhsa_kernarg_size 56
  .amdhsa_user_sgpr_count 2
  .amdhsa_user_sgpr_kernarg_segment_ptr 1
  .amdhsa_system_sgpr_workgroup_id_x 1
.end_amdhsa_kernel
"""

def build(stamp=False):
    p, pnv, plds = gen_prep()
    a, anv, alds = gen_attn(stamp)
    head = open('cdna_kernels/' + NAME + '.s.ref').read().split('; Override launch')[0]
    s = head
    s += f'; @launch kernel=prep_kernel grid=(256,1,1) block=(256,1,1) lds={plds}\n'
    s += f'; @launch kernel={NAME}_kernel grid=(256,1,1) block=(256,1,1) lds={alds}\n'
    s += '.amdgcn_target "amdgcn-amd-amdhsa--gfx950"\n.text\n'
    for nm, body in (('prep_kernel', p), (NAME + '_kernel', a)):
        s += f'.globl {nm}\n.p2align 8\n.type {nm},@function\n{nm}:\n{body}'
    s += '.section .rodata,"a"\n.p2align 6\n' + kd('prep_kernel', pnv, (pnv + 3) // 4 * 4) + '.p2align 6\n' + kd(NAME + '_kernel', anv, NV)
    return s

if __name__ == '__main__':
    out = sys.argv[1] if len(sys.argv) > 1 else 'cdna_kernels/' + NAME + '.s'
    open(out, 'w').write(build(stamp='stamp' in sys.argv))
```
